```python
import torch

def _softmax(x, axis=-1):
    return torch.softmax(x, dim=axis)
def _gelu(x):
    return torch.nn.functional.gelu(x, approximate="tanh")
def _silu(x):
    return torch.nn.functional.silu(x)
def _sigmoid(x):
    return torch.sigmoid(x)
def _layernorm(x, axis=-1, eps=1e-5):
    m = x.mean(dim=axis, keepdim=True)
    v = x.var(dim=axis, keepdim=True, unbiased=False)
    return (x - m) / torch.sqrt(v + eps)
def _scatter_add(tgt, idx, src, axis=0):
    return tgt.clone().index_add_(axis, idx, src)
def _segment_sum(src, seg, n):
    out = torch.zeros((n,) + src.shape[1:], dtype=src.dtype)
    return out.index_add_(0, seg, src)
def _pad(x, pw):
    flat = tuple(v for pair in reversed(pw) for v in pair)
    return torch.nn.functional.pad(x, flat)

kernel_name = 'concat_heads__gqa_block_cached__gqa_block_cached__decode'

def setup_inputs():

    _w = (lambda a: (lambda t: t.to(torch.bfloat16) if t.is_floating_point() else t)(torch.as_tensor(a)))
    def _A_setup():
        B, Sq, D = 2, 1, 512
        Hq, Hkv, Sk, Dh = 32, 32, 8192, 128
        assert Hq % Hkv == 0, (Hq, Hkv)
        return {
            "x": _w((lambda *s: torch.randn(*s, dtype=torch.bfloat16) * 0.8)(B, Sq, D)),
            "k_cache": _w((lambda *s: torch.randn(*s, dtype=torch.bfloat16) * 0.8)(B, Hkv, Sk, Dh)),
            "v_cache": _w((lambda *s: torch.randn(*s, dtype=torch.bfloat16) * 0.05)(B, Hkv, Sk, Dh)),
            "wq": _w((lambda *s: torch.randn(*s, dtype=torch.bfloat16) * 0.8)(D, Hq * Dh) * (D ** -0.5)),
            "wo": _w((lambda *s: torch.randn(*s, dtype=torch.bfloat16) * 0.05)(Hq * Dh, D) * ((Hq * Dh) ** -0.5)),
        }
    _A_in = _A_setup()

    def _B_setup():
        B, Sq, D = 2, 1, 512
        Hq, Hkv, Sk, Dh = 32, 32, 8192, 128
        assert Hq % Hkv == 0, (Hq, Hkv)
        return {
            "x": _w((lambda *s: torch.randn(*s, dtype=torch.bfloat16) * 0.8)(B, Sq, D)),
            "k_cache": _w((lambda *s: torch.randn(*s, dtype=torch.bfloat16) * 0.8)(B, Hkv, Sk, Dh)),
            "v_cache": _w((lambda *s: torch.randn(*s, dtype=torch.bfloat16) * 0.05)(B, Hkv, Sk, Dh)),
            "wq": _w((lambda *s: torch.randn(*s, dtype=torch.bfloat16) * 0.8)(D, Hq * Dh) * (D ** -0.5)),
            "wo": _w((lambda *s: torch.randn(*s, dtype=torch.bfloat16) * 0.05)(Hq * Dh, D) * ((Hq * Dh) ** -0.5)),
        }
    _B_in = _B_setup()

    return {
        "A_x": _A_in["x"],
        "A_k_cache": _A_in["k_cache"],
        "A_v_cache": _A_in["v_cache"],
        "A_wq": _A_in["wq"],
        "A_wo": _A_in["wo"],
        "B_x": _B_in["x"],
        "B_k_cache": _B_in["k_cache"],
        "B_v_cache": _B_in["v_cache"],
        "B_wq": _B_in["wq"],
        "B_wo": _B_in["wo"],
    }

def reference(A_x, A_k_cache, A_v_cache, A_wq, A_wo, B_x, B_k_cache, B_v_cache, B_wq, B_wo):
    def _A_ref(x, k_cache, v_cache, wq, wo):
        B, Sq, D = x.shape
        Hq, Dh = 32, 128
        Hkv = k_cache.shape[1]
        rep = Hq // Hkv
        q = (lambda x, *d: x.permute(*d))((x @ wq).reshape(B, Sq, Hq, Dh), 0, 2, 1, 3)
        k = (lambda x, n, axis: torch.repeat_interleave(x, n, dim=axis))(k_cache, rep, axis=1)
        v = (lambda x, n, axis: torch.repeat_interleave(x, n, dim=axis))(v_cache, rep, axis=1)
        scores = torch.einsum("bhqd,bhkd->bhqk", q, k) * (Dh ** -0.5)
        p = _softmax(scores, axis=-1)
        o = torch.einsum("bhqk,bhkd->bhqd", p, v)
        return (lambda x, *d: x.permute(*d))(o, 0, 2, 1, 3).reshape(B, Sq, Hq * Dh) @ wo

    def _B_ref(x, k_cache, v_cache, wq, wo):
        B, Sq, D = x.shape
        Hq, Dh = 32, 128
        Hkv = k_cache.shape[1]
        rep = Hq // Hkv
        q = (lambda x, *d: x.permute(*d))((x @ wq).reshape(B, Sq, Hq, Dh), 0, 2, 1, 3)
        k = (lambda x, n, axis: torch.repeat_interleave(x, n, dim=axis))(k_cache, rep, axis=1)
        v = (lambda x, n, axis: torch.repeat_interleave(x, n, dim=axis))(v_cache, rep, axis=1)
        scores = torch.einsum("bhqd,bhkd->bhqk", q, k) * (Dh ** -0.5)
        p = _softmax(scores, axis=-1)
        o = torch.einsum("bhqk,bhkd->bhqd", p, v)
        return (lambda x, *d: x.permute(*d))(o, 0, 2, 1, 3).reshape(B, Sq, Hq * Dh) @ wo

    a = _A_ref(A_x, A_k_cache, A_v_cache, A_wq, A_wo)
    b = _B_ref(B_x, B_k_cache, B_v_cache, B_wq, B_wo)
    return torch.concatenate([a, b], axis=-1)
```

```python
import sys, math
from asmlib import *
from hazard import pad

DPPALL = "row_mask:0xf bank_mask:0xf"

def gen_main(name, NW=8, G=4, pol="nt", wpol="nt", stamps=False):
    C = 64 // NW
    g4 = min(G, 4)
    NU = C // g4
    NCH = 4096 // (NW * C * 4)
    NB = C // 4
    L = []; A = L.append
    vOff, vT0, vT1 = 1, 2, 3
    Q = [4, 5, 6, 7]
    ACC = list(range(8, 16))
    vM, vL, vAl = 16, 17, 18
    S = list(range(20, 20 + C))
    PLO = [28, 29]; PHI = [30, 31]
    vMx, vT2 = 32, 33
    vXlo, vXhi, vWqOff, vXOff = 34, 35, 36, 37
    vG, vC = 38, 39
    KB0 = 40; VB0 = KB0 + 4 * C; WB0 = VB0 + 4 * C
    NV = WB0 + 8 * C
    KB = lambda j: (KB0 + 4 * j)
    VB = lambda j: (VB0 + 4 * j)
    WB = lambda j: (WB0 + 4 * j)
    rng = lambda b: f"v[{b}:{b+3}]"
    QP = 0; OP = QP + NW * 512; ML = OP + NW * 512; PP = ML + 128; LDS = PP + NW * 2048
    sK, sV, sW, sX, sP = 20, 24, 28, 32, 36
    sGrp, sMem, sBr, sH, sB, sHalf, sWv, sCnt, sCS, sStride, sTmp, sTup = 40, 41, 42, 43, 44, 45, 47, 48, 49, 50, 51, 52
    sOff = 56
    sSt = 72

    A(kstart(name))
    A(f"  s_cmp_ge_u32 s2, 256")
    A(f"  s_cbranch_scc1 {name}_end")
    if stamps: A(f"  s_memrealtime s[{sSt}:{sSt+1}]")
    A(f"  s_and_b32 s{sGrp}, s2, 7")
    A(f"  s_lshr_b32 s{sMem}, s2, 5")
    A(f"  s_lshl_b32 s{sGrp}, s{sGrp}, 3")
    A(f"  s_add_u32 s{sGrp}, s{sGrp}, s{sMem}")
    A(f"  s_lshr_b32 s{sMem}, s2, 3")
    A(f"  s_and_b32 s{sMem}, s{sMem}, 3")
    A(f"  s_lshr_b32 s{sBr}, s{sGrp}, 5")
    A(f"  s_and_b32 s{sH}, s{sGrp}, 31")
    A(f"  s_lshr_b32 s{sB}, s{sMem}, 1")
    A(f"  s_and_b32 s{sHalf}, s{sMem}, 1")
    A(f"  s_mul_i32 s46, s{sBr}, 40")
    A(f"  s_add_u32 s14, s0, s46")
    A(f"  s_addc_u32 s15, s1, 0")
    A(f"  s_load_dwordx8 s[4:11], s[14:15], 0")
    A(f"  s_load_dwordx2 s[12:13], s[14:15], 32")
    A(f"  s_load_dwordx2 s[16:17], s[0:1], 96")
    A(f"  v_lshrrev_b32 v{vT0}, 6, v0")
    A(f"  v_and_b32 v{vT1}, 63, v0")
    A(f"  v_readfirstlane_b32 s{sWv}, v{vT0}")
    A(f"  v_lshlrev_b32 v{vOff}, 4, v{vT1}")
    A(f"  v_lshrrev_b32 v{vG}, 4, v{vT1}")
    A(f"  v_and_b32 v{vC}, 15, v{vT1}")
    A(f"  v_lshlrev_b32 v{vWqOff}, 13, v{vG}")
    A(f"  v_lshl_add_u32 v{vWqOff}, v{vC}, 4, v{vWqOff}")
    A(f"  v_lshl_add_u32 v{vXOff}, v{vC}, 2, v{vG}")
    A(f"  v_lshlrev_b32 v{vXOff}, 1, v{vXOff}")
    A(f"  s_mov_b32 s{sCS}, 0x{f2u(math.log2(math.e)/math.sqrt(128.0)):08x}")
    A(f"  s_lshl_b32 s{sTup}, s{sB}, 5")
    A(f"  s_add_u32 s{sTup}, s{sTup}, s{sH}")
    A(f"  s_lshl_b32 s{sTup}, s{sTup}, 1")
    A(f"  s_add_u32 s{sTup}, s{sTup}, s{sHalf}")
    A(f"  s_waitcnt lgkmcnt(0)")
    def srd(s, lo, hi, n):
        A(f"  s_mov_b32 s{s}, s{lo}"); A(f"  s_and_b32 s{s+1}, s{hi}, 0xffff"); A(f"  s_mov_b32 s{s+2}, {n}"); A(f"  s_mov_b32 s{s+3}, 0x20000")
    srd(sX, 4, 5, 2048)
    srd(sW, 10, 11, 4 << 20)
    srd(sK, 6, 7, 128 << 20)
    srd(sV, 8, 9, 128 << 20)
    A(f"  s_lshl_b32 s{sTmp}, s{sB}, 10")
    A(f"  s_mul_i32 s46, s{sWv}, {512//NW*2}")
    A(f"  s_add_u32 s{sTmp}, s{sTmp}, s46")
    A(f"  buffer_load_ushort v{vXlo}, v{vXOff}, s[{sX}:{sX+3}], s{sTmp} offen")
    A(f"  s_mul_i32 s{sTmp}, s{sWv}, {512//NW*8192}")
    A(f"  s_lshl_b32 s46, s{sH}, 8")
    A(f"  s_add_u32 s{sTmp}, s{sTmp}, s46")
    for i in range(2 * C):
        A(f"  buffer_load_dwordx4 {rng(WB(i))}, v{vWqOff}, s[{sW}:{sW+3}], s{sTmp} offen {wpol}")
        if i < 2 * C - 1: A(f"  s_add_u32 s{sTmp}, s{sTmp}, {4*8192}")
    def koff(i, j):
        return (((i * (C // G) + j // G) * NW) * G + (j % G)) * 1024 if G <= C else None
    assert G <= C and C % G == 0
    chunk_stride = (C // G) * NW * G * 1024
    A(f"  s_lshl_b32 s{sTmp}, s{sTup}, 20")
    A(f"  s_mul_i32 s46, s{sWv}, {G*1024}")
    A(f"  s_add_u32 s{sTmp}, s{sTmp}, s46")
    for u in range(NU):
        A(f"  s_add_u32 s{sOff+u}, s{sTmp}, {koff(0, u*g4)}")
    def issue(slotbase, srdreg, j, p):
        return f"  buffer_load_dwordx4 {rng(slotbase)}, v{vOff}, s[{srdreg}:{srdreg+3}], s{sOff + j//g4} offen offset:{(j%g4)*1024} {p}"
    for j in range(C): A(issue(KB(j), sK, j, pol))
    for j in range(C): A(issue(VB(j), sV, j, pol))
    srd(sP, 16, 17, (512 << 10) + 2048)
    for e in range(8): A(f"  v_mov_b32 v{ACC[e]}, 0")
    A(f"  s_waitcnt vmcnt({4*C})")
    A(f"  v_lshlrev_b32 v{vXhi}, 16, v{vXlo}")
    for i in range(2 * C):
        A(f"  s_waitcnt vmcnt({4*C-1-i})")
        for j in range(4):
            A(f"  v_dot2c_f32_bf16_dpp v{ACC[2*j]}, v{vXlo}, v{WB(i)+j} row_newbcast:{i} {DPPALL}")
            A(f"  v_dot2c_f32_bf16_dpp v{ACC[2*j+1]}, v{vXhi}, v{WB(i)+j} row_newbcast:{i} {DPPALL}")
    def rowreduce8():
        for e in range(4): A(f"  v_permlane32_swap_b32 v{ACC[e]}, v{ACC[e+4]}")
        for e in range(4): A(f"  v_add_f32 v{ACC[e]}, v{ACC[e]}, v{ACC[e+4]}")
        for e in range(2): A(f"  v_permlane16_swap_b32 v{ACC[e]}, v{ACC[e+2]}")
        for e in range(2): A(f"  v_add_f32 v{ACC[e]}, v{ACC[e]}, v{ACC[e+2]}")
    rowreduce8()
    A(f"  v_lshlrev_b32 v{vT0}, 5, v{vC}")
    A(f"  v_lshl_add_u32 v{vT0}, v{vG}, 3, v{vT0}")
    A(f"  s_lshl_b32 s{sTmp}, s{sWv}, 9")
    A(f"  v_add_u32 v{vT2}, s{sTmp}, v{vT0}")
    vLdsW = 19
    A(f"  ds_write_b64 v{vT2}, v[{ACC[0]}:{ACC[1]}] offset:{QP}")
    A(f"  s_waitcnt lgkmcnt(0)")
    A(f"  s_barrier")
    A(f"  v_lshrrev_b32 v{vT0}, 1, v{vOff}")
    for w in range(NW):
        A(f"  ds_read_b64 v[{WB0+2*w}:{WB0+2*w+1}], v{vT0} offset:{QP + w*512}")
    A(f"  s_waitcnt lgkmcnt(0)")
    n = NW
    step = 1
    while step < NW:
        for w in range(0, NW, 2*step):
            A(f"  v_add_f32 v{WB0+2*w}, v{WB0+2*w}, v{WB0+2*(w+step)}")
            A(f"  v_add_f32 v{WB0+2*w+1}, v{WB0+2*w+1}, v{WB0+2*(w+step)+1}")
        step *= 2
    A(f"  v_cvt_pk_bf16_f32 v{vT1}, v{WB0}, v{WB0+1}")
    A(f"  v_lshlrev_b32 v{vT0}, 4, v{vC}")
    for k in range(4):
        A(f"  v_add_u32 v{vMx}, {4*k}, v{vT0}")
        A(f"  ds_bpermute_b32 v{Q[k]}, v{vMx}, v{vT1}")
    for e in range(8): A(f"  v_mov_b32 v{ACC[e]}, 0")
    A(f"  v_mov_b32 v{vM}, 0x{f2u(-1e30):08x}")
    A(f"  v_mov_b32 v{vL}, 0")
    A(f"  s_mov_b32 s{sCnt}, {NCH}")
    A(f"  s_waitcnt lgkmcnt(0)")
    if stamps: A(f"  s_memrealtime s[{sSt+2}:{sSt+3}]")
    A(f"{name}_loop:")
    A(f"  s_cmp_eq_u32 s{sCnt}, 1")
    A(f"  s_cbranch_scc1 {name}_last")
    for u in range(NU): A(f"  s_add_u32 s{sOff+u}, s{sOff+u}, {chunk_stride}")
    A(f"  s_branch {name}_body")
    A(f"{name}_last:")
    A(f"  s_mov_b32 s{sK}, s12"); A(f"  s_and_b32 s{sK+1}, s13, 0xffff"); A(f"  s_mov_b32 s{sK+2}, {4<<20}")
    A(f"  s_add_u32 s{sV}, s12, {C*1024}"); A(f"  s_addc_u32 s{sV+1}, s13, 0"); A(f"  s_and_b32 s{sV+1}, s{sV+1}, 0xffff"); A(f"  s_mov_b32 s{sV+2}, {(4<<20) - C*1024}")
    A(f"  s_lshl_b32 s{sTmp}, s{sH}, 17")
    A(f"  s_mul_i32 s46, s{sWv}, {2*C*1024}")
    A(f"  s_add_u32 s{sTmp}, s{sTmp}, s46")
    for u in range(NU): A(f"  s_add_u32 s{sOff+u}, s{sTmp}, {u*g4*1024}")
    A(f"{name}_body:")
    for j in range(C):
        A(f"  s_waitcnt vmcnt({2*C-1})")
        A(f"  v_dot2_f32_bf16 v{S[j]}, v{KB(j)}, v{Q[0]}, 0")
        for k in range(1, 4): A(f"  v_dot2c_f32_bf16 v{S[j]}, v{KB(j)+k}, v{Q[k]}")
        A(issue(KB(j), sK, j, pol))
    H = C // 2
    for t in range(H): A(f"  v_add_f32_dpp v{S[t]}, v{S[t]}, v{S[t]} row_ror:8 row_mask:0xf bank_mask:0x3")
    for t in range(H): A(f"  v_add_f32_dpp v{S[t]}, v{S[t+H]}, v{S[t+H]} row_ror:8 row_mask:0xf bank_mask:0xc")
    for t in range(NB): A(f"  v_add_f32_dpp v{S[t]}, v{S[t]}, v{S[t]} row_half_mirror row_mask:0xf bank_mask:0x5")
    for t in range(NB): A(f"  v_add_f32_dpp v{S[t]}, v{S[t+NB]}, v{S[t+NB]} row_half_mirror row_mask:0xf bank_mask:0xa")
    for t in range(NB): A(f"  v_add_f32_dpp v{S[t]}, v{S[t]}, v{S[t]} quad_perm:[1,0,3,2] {DPPALL}")
    for t in range(NB): A(f"  v_add_f32_dpp v{S[t]}, v{S[t]}, v{S[t]} quad_perm:[2,3,0,1] {DPPALL}")
    for t in range(NB): A(f"  v_mul_f32 v{S[t]}, s{sCS}, v{S[t]}")
    if NB == 2: A(f"  v_max_f32 v{vMx}, v{S[0]}, v{S[1]}")
    else: A(f"  v_mov_b32 v{vMx}, v{S[0]}")
    A(f"  v_max_f32_dpp v{vMx}, v{vMx}, v{vMx} row_ror:4 {DPPALL}")
    A(f"  v_max_f32_dpp v{vMx}, v{vMx}, v{vMx} row_ror:8 {DPPALL}")
    A(f"  v_max_f32 v{vMx}, v{vM}, v{vMx}")
    A(f"  v_sub_f32 v{vAl}, v{vM}, v{vMx}")
    for t in range(NB): A(f"  v_sub_f32 v{S[t]}, v{S[t]}, v{vMx}")
    A(f"  v_exp_f32 v{vAl}, v{vAl}")
    for t in range(NB): A(f"  v_exp_f32 v{S[t]}, v{S[t]}")
    A(f"  v_mov_b32 v{vM}, v{vMx}")
    for e in range(0, 8, 2):
        A(f"  v_pk_mul_f32 v[{ACC[e]}:{ACC[e+1]}], v[{ACC[e]}:{ACC[e+1]}], v[{vAl}:{vAl+1}] op_sel_hi:[1,0]")
    A(f"  v_fma_f32 v{vL}, v{vL}, v{vAl}, v{S[0]}")
    if NB == 2: A(f"  v_add_f32 v{vL}, v{vL}, v{S[1]}")
    A(f"  v_mov_b32 v{vT2}, 0")
    for t in range(NB):
        A(f"  v_cvt_pk_bf16_f32 v{PLO[t]}, v{S[t]}, v{vT2}")
        A(f"  v_cvt_pk_bf16_f32 v{PHI[t]}, v{vT2}, v{S[t]}")
    for u in range(C):
        t = u % NB; beta = u // NB
        A(f"  s_waitcnt vmcnt({2*C-1})")
        for j in range(4):
            A(f"  v_dot2c_f32_bf16_dpp v{ACC[2*j]}, v{PLO[t]}, v{VB(u)+j} row_newbcast:{4*beta} {DPPALL}")
            A(f"  v_dot2c_f32_bf16_dpp v{ACC[2*j+1]}, v{PHI[t]}, v{VB(u)+j} row_newbcast:{4*beta} {DPPALL}")
        A(issue(VB(u), sV, u, pol))
    A(f"  s_sub_u32 s{sCnt}, s{sCnt}, 1")
    A(f"  s_cmp_lg_u32 s{sCnt}, 0")
    A(f"  s_cbranch_scc1 {name}_loop")
    if stamps: A(f"  s_memrealtime s[{sSt+4}:{sSt+5}]")
    A(f"  v_add_f32_dpp v{vL}, v{vL}, v{vL} row_ror:4 {DPPALL}")
    A(f"  v_add_f32_dpp v{vL}, v{vL}, v{vL} row_ror:8 {DPPALL}")
    def allrows(op, r, tmp):
        A(f"  v_mov_b32 v{tmp}, v{r}"); A(f"  v_permlane32_swap_b32 v{r}, v{tmp}"); A(f"  {op} v{r}, v{r}, v{tmp}")
        A(f"  v_mov_b32 v{tmp}, v{r}"); A(f"  v_permlane16_swap_b32 v{r}, v{tmp}"); A(f"  {op} v{r}, v{r}, v{tmp}")
    A(f"  v_mov_b32 v{vMx}, v{vM}")
    allrows("v_max_f32", vMx, vT2)
    A(f"  v_sub_f32 v{vAl}, v{vM}, v{vMx}")
    A(f"  v_exp_f32 v{vAl}, v{vAl}")
    for e in range(0, 8, 2):
        A(f"  v_pk_mul_f32 v[{ACC[e]}:{ACC[e+1]}], v[{ACC[e]}:{ACC[e+1]}], v[{vAl}:{vAl+1}] op_sel_hi:[1,0]")
    A(f"  v_mul_f32 v{vL}, v{vL}, v{vAl}")
    allrows("v_add_f32", vL, vT2)
    rowreduce8()
    A(f"  v_lshlrev_b32 v{vT0}, 5, v{vC}")
    A(f"  v_lshl_add_u32 v{vT0}, v{vG}, 3, v{vT0}")
    A(f"  s_lshl_b32 s{sTmp}, s{sWv}, 9")
    A(f"  v_add_u32 v{vT2}, s{sTmp}, v{vT0}")
    A(f"  ds_write_b64 v{vT2}, v[{ACC[0]}:{ACC[1]}] offset:{OP}")
    A(f"  s_lshl_b32 s{sTmp}, s{sWv}, 2")
    A(f"  v_mov_b32 v{vT0}, s{sTmp}")
    A(f"  s_mov_b64 exec, 1")
    A(f"  ds_write_b32 v{vT0}, v{vMx} offset:{ML}")
    A(f"  ds_write_b32 v{vT0}, v{vL} offset:{ML+64}")
    A(f"  s_mov_b64 exec, -1")
    A(f"  s_waitcnt lgkmcnt(0)")
    A(f"  s_barrier")
    MB = WB0; LB = WB0 + 16 if NW == 8 else WB0 + 16
    A(f"  v_mov_b32 v{vT0}, 0")
    for k in range(NW // 4):
        A(f"  ds_read_b128 v[{MB+4*k}:{MB+4*k+3}], v{vT0} offset:{ML+16*k}")
    for k in range(NW // 4):
        A(f"  ds_read_b128 v[{LB+4*k}:{LB+4*k+3}], v{vT0} offset:{ML+64+16*k}")
    OB = WB0 + 32 if NW == 8 else None
    A(f"  s_mul_i32 s{sTmp}, s{sWv}, {2*C*4}")
    A(f"  v_lshlrev_b32 v{vT1}, 2, v{vC}")
    A(f"  v_add_u32 v{vT1}, s{sTmp}, v{vT1}")
    if NW == 8:
        for w in range(NW): A(f"  ds_read_b32 v{OB+w}, v{vT1} offset:{OP + w*512}")
    A(f"  s_waitcnt lgkmcnt({8 if NW==8 else 0})")
    A(f"  v_max_f32 v{vMx}, v{MB}, v{MB+1}")
    for w in range(2, NW): A(f"  v_max_f32 v{vMx}, v{vMx}, v{MB+w}")
    for w in range(NW): A(f"  v_sub_f32 v{MB+w}, v{MB+w}, v{vMx}")
    for w in range(NW): A(f"  v_exp_f32 v{MB+w}, v{MB+w}")
    A(f"  v_mul_f32 v{vL}, v{MB}, v{LB}")
    for w in range(1, NW): A(f"  v_fma_f32 v{vL}, v{MB+w}, v{LB+w}, v{vL}")
    if NW == 16:
        OB = LB
        for w in range(NW): A(f"  ds_read_b32 v{OB+w}, v{vT1} offset:{OP + w*512}")
    A(f"  s_waitcnt lgkmcnt(0)")
    A(f"  v_mul_f32 v{vT0}, v{MB}, v{OB}")
    for w in range(1, NW): A(f"  v_fma_f32 v{vT0}, v{MB+w}, v{OB+w}, v{vT0}")
    A(f"  v_mov_b32 v{vT2}, 0")
    A(f"  v_cvt_pk_bf16_f32 v{PLO[0]}, v{vT0}, v{vT2}")
    A(f"  v_cvt_pk_bf16_f32 v{PHI[0]}, v{vT2}, v{vT0}")
    for e in range(8): A(f"  v_mov_b32 v{ACC[e]}, 0")
    for r in range(2 * C):
        wb = KB(r) if r < C else VB(r - C)
        A(f"  s_waitcnt vmcnt({2*C-1-r})")
        for j in range(4):
            A(f"  v_dot2c_f32_bf16_dpp v{ACC[2*j]}, v{PLO[0]}, v{wb+j} row_newbcast:{r} {DPPALL}")
            A(f"  v_dot2c_f32_bf16_dpp v{ACC[2*j+1]}, v{PHI[0]}, v{wb+j} row_newbcast:{r} {DPPALL}")
    A(f"  v_lshlrev_b32 v{vT0}, 1, v{vOff}")
    A(f"  s_lshl_b32 s{sTmp}, s{sWv}, 11")
    A(f"  v_add_u32 v{vT0}, s{sTmp}, v{vT0}")
    A(f"  ds_write_b128 v{vT0}, v[{ACC[0]}:{ACC[3]}] offset:{PP}")
    A(f"  ds_write_b128 v{vT0}, v[{ACC[4]}:{ACC[7]}] offset:{PP+16}")
    A(f"  s_waitcnt lgkmcnt(0)")
    A(f"  s_barrier")
    if NW > 8:
        A(f"  s_cmp_ge_u32 s{sWv}, 8")
        A(f"  s_cbranch_scc1 {name}_end")
    A(f"  v_lshlrev_b32 v{vT0}, 2, v0")
    for w in range(NW): A(f"  ds_read_b32 v{WB0+w}, v{vT0} offset:{PP + w*2048}")
    A(f"  s_waitcnt lgkmcnt(0)")
    step = 1
    while step < NW:
        for w in range(0, NW, 2*step): A(f"  v_add_f32 v{WB0+w}, v{WB0+w}, v{WB0+w+step}")
        step *= 2
    A(f"  s_lshl_b32 s{sTmp}, s{sBr}, 7")
    A(f"  s_add_u32 s{sTmp}, s{sTmp}, s{sTup}")
    A(f"  s_lshl_b32 s46, s{sTmp}, 11")
    A(f"  buffer_store_dword v{WB0}, v{vT0}, s[{sP}:{sP+3}], s46 offen")
    A(f"  s_cmp_lg_u32 s{sWv}, 0")
    A(f"  s_cbranch_scc1 {name}_end")
    A(f"  s_lshl_b32 s46, s{sTmp}, 3")
    A(f"  s_add_u32 s46, s46, {512<<10}")
    A(f"  v_mov_b32 v{vMx+1}, v{vL}")
    A(f"  v_mov_b32 v{vT0}, 0")
    A(f"  s_mov_b64 exec, 1")
    A(f"  buffer_store_dwordx2 v[{vMx}:{vMx+1}], v{vT0}, s[{sP}:{sP+3}], s46 offen")
    if stamps:
        A(f"  s_waitcnt vmcnt(0)")
        A(f"  s_memrealtime s[{sSt+6}:{sSt+7}]")
        A(f"  s_waitcnt lgkmcnt(0)")
        A("  s_add_u32 s16, s16, 0x4000000"); A("  s_addc_u32 s17, s17, 0")
        A("  s_mov_b32 s80, s16"); A("  s_and_b32 s81, s17, 0xffff"); A(f"  s_mov_b32 s82, {256*64}"); A("  s_mov_b32 s83, 0x20000")
        A("  s_getreg_b32 s84, hwreg(HW_REG_XCC_ID)")
        A(f"  v_mov_b32 v40, s{sSt}"); A(f"  v_mov_b32 v41, s{sSt+2}"); A(f"  v_mov_b32 v42, s{sSt+6}"); A("  v_mov_b32 v43, s84")
        A(f"  v_mov_b32 v44, s{sSt+4}"); A("  v_mov_b32 v45, 0"); A("  v_mov_b32 v46, 0"); A("  v_mov_b32 v47, 0")
        A("  s_lshl_b32 s85, s2, 6"); A("  v_mov_b32 v48, s85")
        A("  buffer_store_dwordx4 v[40:43], v48, s[80:83], 0 offen")
        A("  buffer_store_dwordx4 v[44:47], v48, s[80:83], 0 offen offset:16")
    A(f"{name}_end:")
    A(f"  s_endpgm")
    lines = pad(L)
    code = "\n".join(lines) + "\n" + kdesc(name, NV, sgpr=96)
    return code, LDS

import struct
def f2u(f): return struct.unpack("<I", struct.pack("<f", f))[0]

def gen_final(name):
    L = []; A = L.append
    A(kstart(name))
    A(f"  s_cmp_ge_u32 s2, 32")
    A(f"  s_cbranch_scc1 {name}_end")
    A(f"  s_load_dwordx2 s[4:5], s[0:1], 96")
    A(f"  s_load_dwordx2 s[6:7], s[0:1], 80")
    A(f"  s_lshr_b32 s10, s2, 3")
    A(f"  s_and_b32 s11, s2, 7")
    A(f"  v_lshrrev_b32 v1, 4, v0")
    A(f"  v_and_b32 v2, 15, v0")
    A(f"  v_lshlrev_b32 v3, 13, v1")
    A(f"  v_lshl_add_u32 v3, v2, 4, v3")
    A(f"  s_lshl_b32 s12, s10, 17")
    A(f"  s_lshl_b32 s13, s11, 8")
    A(f"  s_add_u32 s12, s12, s13")
    A(f"  v_lshlrev_b32 v4, 5, v1")
    A(f"  s_lshl_b32 s14, s10, 9")
    A(f"  s_add_u32 s14, s14, {512<<10}")
    A(f"  s_waitcnt lgkmcnt(0)")
    A(f"  s_mov_b32 s20, s4"); A(f"  s_and_b32 s21, s5, 0xffff"); A(f"  s_mov_b32 s22, {(512<<10)+2048}"); A(f"  s_mov_b32 s23, 0x20000")
    A(f"  s_mov_b32 s24, s6"); A(f"  s_and_b32 s25, s7, 0xffff"); A(f"  s_mov_b32 s26, 4096"); A(f"  s_mov_b32 s27, 0x20000")
    A(f"  buffer_load_dwordx4 v[8:11], v4, s[20:23], s14 offen")
    A(f"  buffer_load_dwordx4 v[12:15], v4, s[20:23], s14 offen offset:16")
    for u in range(4):
        A(f"  buffer_load_dwordx4 v[{16+4*u}:{19+4*u}], v3, s[20:23], s12 offen offset:{u*2048 if u<2 else 0}" if u < 2 else
          f"  buffer_load_dwordx4 v[{16+4*u}:{19+4*u}], v5, s[20:23], s12 offen offset:{(u-2)*2048}")
        if u == 1: A(f"  v_add_u32 v5, 4096, v3")
    A(f"  s_waitcnt vmcnt(4)")
    for b in (8, 12):
        A(f"  v_max_f32 v32, v{b}, v{b+2}")
        A(f"  v_sub_f32 v{b}, v{b}, v32")
        A(f"  v_sub_f32 v{b+2}, v{b+2}, v32")
        A(f"  v_exp_f32 v{b}, v{b}")
        A(f"  v_exp_f32 v{b+2}, v{b+2}")
        A(f"  v_mul_f32 v33, v{b}, v{b+1}")
        A(f"  v_fma_f32 v33, v{b+2}, v{b+3}, v33")
        A(f"  v_rcp_f32 v33, v33")
        A(f"  v_mul_f32 v{b}, v{b}, v33")
        A(f"  v_mul_f32 v{b+2}, v{b+2}, v33")
    A(f"  s_waitcnt vmcnt(0)")
    wts = [8, 10, 12, 14]
    for k in range(4):
        A(f"  v_mul_f32 v{36+k}, v{wts[0]}, v{16+k}")
        for u in range(1, 4): A(f"  v_fma_f32 v{36+k}, v{wts[u]}, v{16+4*u+k}, v{36+k}")
    for e in range(2): A(f"  v_permlane32_swap_b32 v{36+e}, v{38+e}")
    for e in range(2): A(f"  v_add_f32 v{36+e}, v{36+e}, v{38+e}")
    A(f"  v_permlane16_swap_b32 v36, v37")
    A(f"  v_add_f32 v36, v36, v37")
    A(f"  v_and_b32 v6, 63, v0")
    A(f"  v_lshrrev_b32 v6, 4, v6")
    A(f"  v_lshl_add_u32 v6, v2, 2, v6")
    A(f"  v_lshrrev_b32 v7, 6, v0")
    A(f"  v_lshl_add_u32 v6, v7, 6, v6")
    A(f"  v_lshlrev_b32 v6, 2, v6")
    A(f"  ds_write_b32 v6, v36")
    A(f"  s_waitcnt lgkmcnt(0)")
    A(f"  s_barrier")
    A(f"  v_cmp_gt_u32 vcc, 32, v0")
    A(f"  s_and_saveexec_b64 s[16:17], vcc")
    A(f"  s_cbranch_execz {name}_end")
    A(f"  v_lshlrev_b32 v6, 3, v0")
    for w in range(4): A(f"  ds_read_b64 v[{8+2*w}:{9+2*w}], v6 offset:{w*256}")
    A(f"  s_waitcnt lgkmcnt(0)")
    A(f"  v_add_f32 v8, v8, v10"); A(f"  v_add_f32 v9, v9, v11"); A(f"  v_add_f32 v12, v12, v14"); A(f"  v_add_f32 v13, v13, v15")
    A(f"  v_add_f32 v8, v8, v12"); A(f"  v_add_f32 v9, v9, v13")
    A(f"  v_cvt_pk_bf16_f32 v8, v8, v9")
    A(f"  s_and_b32 s15, s10, 1")
    A(f"  s_lshr_b32 s18, s10, 1")
    A(f"  s_lshl_b32 s15, s15, 11")
    A(f"  s_lshl_b32 s18, s18, 10")
    A(f"  s_add_u32 s15, s15, s18")
    A(f"  s_lshl_b32 s18, s11, 7")
    A(f"  s_add_u32 s15, s15, s18")
    A(f"  v_lshlrev_b32 v6, 2, v0")
    A(f"  buffer_store_dword v8, v6, s[24:27], s15 offen")
    A(f"{name}_end:")
    A(f"  s_endpgm")
    lines = pad(L)
    return "\n".join(lines) + "\n" + kdesc(name, 48, sgpr=32), 1024

if __name__ == "__main__":
    variants = []
    fin, finlds = gen_final("fin_kernel")
    for n, spec in enumerate(sys.argv[1:]):
        d = dict(NW=8, G=4, pol="nt", wpol="nt", stamps=True)
        for kv in spec.split(","):
            k, v = kv.split("=")
            d[k] = v.replace("+", " ") if k in ("pol", "wpol") else int(v)
        name = f"a{n}_kernel"
        code, lds = gen_main(name, **d)
        variants.append((spec, [(name, 256, d["NW"]*64, lds), ("fin_kernel", 32, 256, finlds)], code + fin if n == 0 else code))
    build_multi(variants, "attn")
```

```python
import re
TRANS = ("v_exp_f32","v_log_f32","v_rcp_f32","v_rsq_f32","v_sqrt_f32","v_sin_f32","v_cos_f32","v_rcp_iflag_f32")
def regs(tok):
    tok = tok.strip()
    tok = tok.lstrip('-').strip('|')
    m = re.fullmatch(r'([vsa])(\d+)', tok)
    if m: return {(m.group(1), int(m.group(2)))}
    m = re.fullmatch(r'([vsa])\[(\d+):(\d+)\]', tok)
    if m: return {(m.group(1), i) for i in range(int(m.group(2)), int(m.group(3))+1)}
    if tok == 'vcc': return {('s',106),('s',107)}
    if tok == 'exec': return {('s',126),('s',127)}
    if tok == 'm0': return {('s',124)}
    return set()
def parse(line):
    s = line.split(';')[0].strip()
    if not s or s.endswith(':') or s.startswith('.'): return None
    parts = s.split(None, 1)
    mn = parts[0]
    ops = []
    rest = parts[1] if len(parts) > 1 else ''
    cur=''; depth=0
    for ch in rest:
        if ch=='[': depth+=1
        if ch==']': depth-=1
        if ch==',' and depth==0: ops.append(cur.strip()); cur=''
        else: cur+=ch
    if cur.strip(): ops.append(cur.strip())
    mods=''
    if ops:
        p = ops[-1].split(None,1)
        ops[-1]=p[0]
        if len(p)>1: mods=p[1]
    return mn, ops, mods
def analyze(line):
    p = parse(line)
    if p is None: return None
    mn, ops, mods = p
    d = dict(mn=mn, valu=False, trans=False, dpp=False, perm=False, rdlane=False, vmem=False, w=set(), r=set(), store_data=set(), states=1, mfma=False)
    base = mn.replace('_e32','').replace('_e64','').replace('_dpp','').replace('_sdwa','')
    if mn == 's_nop':
        d['states'] = int(ops[0],0)+1
        return d
    if mn.startswith('v_'):
        d['valu']=True
        d['trans']= base in TRANS
        d['dpp'] = ('_dpp' in mn) or ('row_' in mods) or ('quad_perm' in mods)
        if base.startswith('v_mfma'):
            d['mfma']=True
        if base.startswith('v_permlane') and 'swap' in base:
            d['perm']=True
            d['w']=regs(ops[0])|regs(ops[1]); d['r']=set(d['w'])
            return d
        if base in ('v_readlane_b32','v_readfirstlane_b32'): d['rdlane']=True
        d['w']=regs(ops[0])
        srcs=ops[1:]
        if base in ('v_add_co_u32','v_sub_co_u32','v_addc_co_u32','v_subb_co_u32'):
            d['w']|=regs(ops[1]); srcs=ops[2:]
        for o in srcs: d['r']|=regs(o)
        if base.startswith('v_fmac') or base.startswith('v_dot2c') or base=='v_writelane_b32': d['r']|=regs(ops[0])
        if base.startswith('v_cmp') and not mn.endswith('_e64') and ops[0]=='vcc': pass
        if base=='v_cndmask_b32' and len(ops)==3: d['r']|=regs('vcc')
        if base.startswith('v_cmpx'): d['w']|=regs('exec')
        return d
    if mn.startswith(('buffer_','global_','flat_')):
        d['vmem']=True
        for o in ops: d['r']|=regs(o)
        if 'store' in mn and ('x4' in mn or 'x3' in mn):
            d['store_data']=regs(ops[0] if mn.startswith('buffer_') else ops[1])
        return d
    if mn.startswith('ds_'):
        for o in ops: d['r']|=regs(o)
        d['ds']=True
        return d
    return d
def pad(lines):
    out=[]; hist=[]
    def dist_iter():
        acc=0
        for info in reversed(hist):
            yield info, acc
            acc+=info['states']
            if acc>14: break
    for line in lines:
        for l in line.split('\n'):
            info=analyze(l)
            if info is None:
                out.append(l); continue
            need=0
            vr={x for x in info['r'] if x[0]=='v'}
            sr={x for x in info['r'] if x[0]=='s'}
            for prev,gap in dist_iter():
                if prev['valu']:
                    pw_v={x for x in prev['w'] if x[0]=='v'}
                    pw_s={x for x in prev['w'] if x[0]=='s'}
                    if info['dpp'] and (pw_v & vr): need=max(need,2-gap)
                    if info['perm'] and (pw_v & vr): need=max(need,2-gap)
                    if info['rdlane'] and (pw_v & vr): need=max(need,1-gap)
                    if info['mfma'] and (pw_v & vr) and not prev['mfma']: need=max(need,2-gap)
                    if prev['trans'] and info['valu'] and not info['trans'] and (pw_v & vr): need=max(need,1-gap)
                    if prev['trans'] and (info['vmem'] or info.get('ds')) and (pw_v & vr): need=max(need,1-gap)
                    if info['valu'] and (pw_s & sr): need=max(need,(4 if info['rdlane'] else 2)-gap)
                    if info['vmem'] and (pw_s & sr): need=max(need,5-gap)
                    if info['dpp'] and (pw_s & regs('exec')): need=max(need,5-gap)
                    if prev['mfma'] and (info['valu'] or info['vmem'] or info.get('ds')) and not info['mfma'] and (pw_v & (vr|{x for x in info['w'] if x[0]=='v'})): need=max(need,12-gap)
                if prev['store_data'] and info['valu'] and (prev['store_data'] & info['w']): need=max(need,2-gap)
            if need>0:
                n=f"  s_nop {need-1}"
                out.append(n); hist.append(analyze(n))
            out.append(l); hist.append(info)
            hist=hist[-24:]
    return out
```

```python
import sys
from asmlib import *
import gen_attn
def emit(path, variants_launch, code):
    L = [HEADER.rstrip("\n")]
    for (k, gx, bx, lds) in variants_launch:
        L.append(f"; @launch kernel={k} grid=({gx},1,1) block=({bx},1,1) lds={lds}")
    L.append('.amdgcn_target "amdgcn-amd-amdhsa--gfx950"')
    L.append(code)
    text = "\n".join(L) + "\n"
    open(path, "w").write(text)
    return text
if __name__ == "__main__":
    out = sys.argv[1]; spec = sys.argv[2]
    d = dict(NW=8, G=4, pol="nt", wpol="nt", stamps=False)
    for kv in spec.split(","):
        if not kv: continue
        k, v = kv.split("=")
        d[k] = v.replace("+", " ") if k in ("pol", "wpol") else int(v)
    main, lds = gen_attn.gen_main("attn_main_kernel", **d)
    fin, finlds = gen_attn.gen_final("attn_fin_kernel")
    emit(out, [("attn_main_kernel", 256, d["NW"]*64, lds), ("attn_fin_kernel", 32, 256, finlds)], main + fin)
```
